```python
import torch

def _softmax(x, axis=-1):
    return torch.softmax(x, dim=axis)
def _gelu(x):
    return torch.nn.functional.gelu(x, approximate="tanh")
def _silu(x):
    return torch.nn.functional.silu(x)
def _sigmoid(x):
    return torch.sigmoid(x)
def _layernorm(x, axis=-1, eps=1e-5):
    m = x.mean(dim=axis, keepdim=True)
    v = x.var(dim=axis, keepdim=True, unbiased=False)
    return (x - m) / torch.sqrt(v + eps)
def _scatter_add(tgt, idx, src, axis=0):
    return tgt.clone().index_add_(axis, idx, src)
def _segment_sum(src, seg, n):
    out = torch.zeros((n,) + src.shape[1:], dtype=src.dtype)
    return out.index_add_(0, seg, src)
def _pad(x, pw):
    flat = tuple(v for pair in reversed(pw) for v in pair)
    return torch.nn.functional.pad(x, flat)

kernel_name = 'interleave_layers__ssm_conv_h3__dense_activation_silu__prompt'

def setup_inputs():

    _w = (lambda a: (lambda t: t.to(torch.bfloat16) if t.is_floating_point() else t)(torch.as_tensor(a)))
    def _A_setup():
        B, S, D = 1, 2048, 448
        ks = 4
        return {
            "q": _w((lambda *s: torch.randn(*s, dtype=torch.bfloat16) * 0.05)(B, S, D)),
            "k": _w((lambda *s: torch.randn(*s, dtype=torch.bfloat16) * 0.2)(B, S, D)),
            "v": _w((lambda *s: torch.randn(*s, dtype=torch.bfloat16) * 0.2)(B, S, D)),
            "shift_k": _w((lambda *s: torch.randn(*s, dtype=torch.bfloat16) * 0.2)(D, ks) * 0.5),
            "ssm_k": _w((lambda *s: torch.randn(*s, dtype=torch.bfloat16) * 0.4)(D, S) * (1.0 / S ** 0.5)),
            "ssm_D": _w((lambda *s: torch.randn(*s, dtype=torch.bfloat16) * 0.2)(D)),
        }
    _A_in = _A_setup()

    def _B_setup():
        B, S, D, F = 1, 2048, 448, 1792
        return {
            "x": _w((lambda *s: torch.randn(*s, dtype=torch.bfloat16) * 0.05)(B, S, D)),
            "w1": _w((lambda *s: torch.randn(*s, dtype=torch.bfloat16) * 0.4)(D, F) * (D ** -0.5)),
            "w2": _w((lambda *s: torch.randn(*s, dtype=torch.bfloat16) * 0.1)(F, D) * (F ** -0.5)),
        }
    _B_in = _B_setup()

    return {
        "A_q": _A_in["q"],
        "A_k": _A_in["k"],
        "A_v": _A_in["v"],
        "A_shift_k": _A_in["shift_k"],
        "A_ssm_k": _A_in["ssm_k"],
        "A_ssm_D": _A_in["ssm_D"],
        "B_x": _B_in["x"],
        "B_w1": _B_in["w1"],
        "B_w2": _B_in["w2"],
    }

def reference(A_q, A_k, A_v, A_shift_k, A_ssm_k, A_ssm_D, B_x, B_w1, B_w2):
    def _A_ref(q, k, v, shift_k, ssm_k, ssm_D):
        B, S, D = q.shape
        ks = shift_k.shape[-1]
        k_pad = _pad(k, ((0, 0), (ks - 1, 0), (0, 0)))
        k_shift = torch.zeros_like(k)
        for t in range(ks):
            k_shift = k_shift + k_pad[:, t:t + S, :] * shift_k[:, ks - 1 - t][None, None, :]
        kv = k_shift * v
        L = 2 * S
        kv_pad = _pad(kv, ((0, 0), (0, S), (0, 0)))
        kf_pad = _pad(ssm_k, ((0, 0), (0, S)))
        kv_f = (lambda x, axes=(-2,-1): torch.fft.rfft2(x.float(), dim=axes))(kv_pad[:, None, :, :], axes=(1, 2))
        kf_f = (lambda x, axes=(-2,-1): torch.fft.rfft2(x.float(), dim=axes))(kf_pad[:, None, :], axes=(1, 2))
        kf_f = (lambda x, *d: x.permute(*d))(kf_f, 1, 2, 0)
        y_f = kv_f * kf_f[None, :, :, :]
        y = (lambda x, s, axes=(-2,-1): torch.fft.irfft2(x, s=s, dim=axes).to(torch.bfloat16))(y_f, (1, L), axes=(1, 2))[:, 0, :S, :]
        y = y + kv * ssm_D[None, None, :]
        return q * y

    def _B_ref(x, w1, w2):
        h = torch.einsum("bsd,df->bsf", x, w1)
        h = _silu(h)
        out = torch.einsum("bsf,fd->bsd", h, w2)
        return out

    x = A_q
    x = x + _A_ref(_layernorm(x, axis=-1), A_k, A_v, A_shift_k, A_ssm_k, A_ssm_D)
    x = x + _B_ref(_layernorm(x, axis=-1), B_w1, B_w2)
    x = x + _A_ref(_layernorm(x, axis=-1), A_k, A_v, A_shift_k, A_ssm_k, A_ssm_D)
    x = x + _B_ref(_layernorm(x, axis=-1), B_w1, B_w2)
    return x
```

```python
import re

class Asm:
    def __init__(self):
        self.lines = []
        self.nlabel = 0
    def __call__(self, s=''):
        for l in s.split('\n'):
            l = l.strip()
            if l:
                self.lines.append('    ' + l if not l.endswith(':') else l)
    def raw(self, s):
        self.lines.append(s)
    def label(self, name):
        self.lines.append(name + ':')
    def newlabel(self, pre='L'):
        self.nlabel += 1
        return f'{pre}_{self.nlabel}'
    def text(self):
        return '\n'.join(self.lines) + '\n'
    def extend(self, lst):
        for l in lst:
            self(l)

def vr(b, n=1):
    return f'v{b}' if n == 1 else f'v[{b}:{b+n-1}]'
def ar(b, n=1):
    return f'a{b}' if n == 1 else f'a[{b}:{b+n-1}]'
def sr(b, n=1):
    return f's{b}' if n == 1 else f's[{b}:{b+n-1}]'

def R(reg, n=1):
    return vr(reg[1], n) if reg[0] == 'v' else ar(reg[1], n)

def interleave(main, fill, start=0, end=None):
    if end is None:
        end = len(main)
    n = end - start
    out = []
    k = 0
    for i, m in enumerate(main):
        out += m
        if start <= i < end:
            want = ((i - start + 1) * len(fill) + n - 1) // n
            want = min(want, len(fill))
            while k < want:
                out.append(fill[k]); k += 1
    out += fill[k:]
    return out

def kernel_desc(name, vgpr=256, agpr=0, sgpr=102):
    if agpr:
        nfv = 256 + agpr; acc = 256
    else:
        nfv = vgpr; acc = (vgpr + 3) // 4 * 4
    return f'''.section .rodata,"a"
.p2align 6
.amdhsa_kernel {name}
  .amdhsa_next_free_vgpr {nfv}
  .amdhsa_next_free_sgpr {sgpr}
  .amdhsa_accum_offset {acc}
  .amdhsa_group_segment_fixed_size 0
  .amdhsa_kernarg_size 96
  .amdhsa_user_sgpr_count 2
  .amdhsa_user_sgpr_kernarg_segment_ptr 1
  .amdhsa_system_sgpr_workgroup_id_x 1
  .amdhsa_float_denorm_mode_32 3
.end_amdhsa_kernel
.text
'''
```

```python
from asmlib import *
NAME = 'interleave_layers__ssm_conv_h3__dense_activation_silu__prompt'
S, D, F = 2048, 448, 1792
NB_QKV = S * D * 2
KA_Q, KA_K, KA_V, KA_SK, KA_SSMK, KA_SSMD, KA_BX, KA_W1, KA_W2, KA_OUT, KA_DBG, KA_WS = [8 * i for i in range(12)]
WS_UT = 0x000000
WS_Y2 = 0x200000
WS_X = [0x400000, 0x600000]
WS_H = [0x800000, 0x1000000]
WS_ST = 0x1800000
WS_FL = 0x1900000
WS_SIZE = 0x2000000
SRD3 = 0x00020000
BIG = 0x7FFFFFF0

def srd(a, dst, src, nbytes):
    a(f'''
    s_mov_b32 s{dst}, s{src}
    s_mov_b32 s{dst+1}, s{src+1}
    s_mov_b32 s{dst+2}, {hex(nbytes)}
    s_mov_b32 s{dst+3}, {hex(SRD3)}
    ''')

def header(a, name):
    a.raw(f'.globl {name}\n.p2align 8\n.type {name},@function\n{name}:')
```

```python
from gen_common import *

KC = 256
KCH = 33280
KCP = 4160
UP = KC + 2 * KCH
UCH = 6144; UPL = 1536
RB = KC
CONV_LDS = UP + 2 * UCH

def emit_conv_loads(a):
    a(f'''
    s_mul_i32 s14, s12, 28
    s_add_u32 s14, s14, s13
    s_lshl_b32 s15, s14, 13
    ''')

def emit_conv(a):
    a(f'''
    v_lshrrev_b32 v1, 6, v0
    v_and_b32 v2, 63, v0                ; lane
    s_nop 0
    v_readfirstlane_b32 s22, v1         ; wave
    s_lshr_b32 s23, s22, 1              ; ch
    s_and_b32 s24, s22, 1               ; half
    ''')
    a(f'''
    s_lshl_b32 s25, s23, 12             ; ch*4096
    s_add_u32 s25, s25, s15
    s_lshl_b32 s26, s24, 5              ; (2*half)*16
    s_add_u32 s25, s25, s26
    s_add_u32 s25, s25, {WS_UT}         ; soffset
    v_lshlrev_b32 v3, 6, v2             ; lane*64
    s_mul_i32 s26, s23, {UCH}
    s_mul_i32 s27, s24, {2*UPL}
    s_add_u32 s26, s26, s27
    s_add_u32 s26, s26, {UP + 512}
    s_mov_b32 m0, s26
    s_add_u32 s27, s25, 16
    buffer_load_dwordx4 v3, s[28:31], s25 offen lds
    s_add_u32 s26, s26, {UPL}
    s_mov_b32 m0, s26
    s_nop 0
    buffer_load_dwordx4 v3, s[28:31], s27 offen lds
    ''')
    a(f'''
    v_lshlrev_b32 v4, 4, v0             ; 16*tid
    v_add_u32 v5, 16, v4
    v_mov_b32 v6, {hex(BIG)}
    v_cmp_eq_u32 vcc, 255, v0
    s_add_u32 s27, s15, 4096
    s_nop 0
    v_cndmask_b32 v4, v4, v6, vcc       ; W0..W3 offset
    v_cndmask_b32 v5, v5, 0, vcc
    ''')
    Wb = [16, 36]
    for ch in range(2):
        so = 's15' if ch == 0 else 's27'
        for j in range(4):
            a(f'buffer_load_dwordx4 v[{Wb[ch]+4*j}:{Wb[ch]+4*j+3}], v4, s[16:19], {so} offen offset:{4*j}')
        a(f'buffer_load_dwordx4 v[{Wb[ch]+16}:{Wb[ch]+19}], v5, s[16:19], {so} offen')
    a(f'''
    v_mov_b32 v8, 0
    v_mov_b32 v9, 0
    v_mov_b32 v10, 0
    v_mov_b32 v11, 0
    v_lshrrev_b32 v7, 5, v0             ; plane 0..7
    v_mul_u32_u24 v7, {UPL}, v7
    v_and_b32 v12, 31, v0
    v_lshl_add_u32 v7, v12, 4, v7
    v_add_u32 v7, {UP}, v7
    ds_write_b128 v7, v[8:11]
    ; k copies zero slots q=0..2 : 48 threads: idx = tid: copy16 = tid/3, q = tid%3
    v_mul_u32_u24 v7, 21846, v0
    v_lshrrev_b32 v7, 16, v7            ; tid/3
    v_mul_u32_u24 v12, 3, v7
    v_sub_u32 v12, v0, v12              ; q
    v_mul_u32_u24 v7, {KCP}, v7
    v_lshl_add_u32 v7, v12, 4, v7
    v_cmp_gt_u32 vcc, 48, v0
    s_and_saveexec_b64 s[40:41], vcc
    s_cbranch_execz L_cv_z
    ds_write_b128 v7, v[8:11] offset:{KC}
L_cv_z:
    s_mov_b64 exec, s[40:41]
    v_add_u32 v13, 4, v0
    v_cmp_eq_u32 vcc, 255, v0
    s_nop 1
    v_cndmask_b32 v13, v13, 3, vcc
    v_lshlrev_b32 v13, 4, v13
    ''')
    O = 56
    for ch in range(2):
        W = Wb[ch]
        a(f's_waitcnt vmcnt({5 if ch == 0 else 0})')
        Q = W + 16
        a(f'''
        v_cndmask_b32 v{W+4+3}, v{W+4+3}, v{Q}, vcc
        v_cndmask_b32 v{W+8+2}, v{W+8+2}, v{Q}, vcc
        v_cndmask_b32 v{W+8+3}, v{W+8+3}, v{Q+1}, vcc
        v_cndmask_b32 v{W+12+1}, v{W+12+1}, v{Q}, vcc
        v_cndmask_b32 v{W+12+2}, v{W+12+2}, v{Q+1}, vcc
        v_cndmask_b32 v{W+12+3}, v{W+12+3}, v{Q+2}, vcc
        ''')
        seq = [W, W + 1, W + 2, W + 3, Q, Q + 1, Q + 2, Q + 3]
        for bi, b in enumerate((0, 2, 4, 6)):
            for i in range(4):
                k = b // 2 + i
                a(f'v_alignbit_b32 v{O+4*bi+i}, v{seq[k+1]}, v{seq[k]}, 16')
        for bi, b in enumerate((0, 2, 4, 6)):
            a(f'ds_write_b128 v13, v[{O+4*bi}:{O+4*bi+3}] offset:{KC+ch*KCH+b*KCP}')
        for b, r in ((1, W + 4), (3, W + 8), (5, W + 12), (7, Q)):
            a(f'ds_write_b128 v13, v[{r}:{r+3}] offset:{KC+ch*KCH+b*KCP}')
        if ch == 0:
            a('s_waitcnt lgkmcnt(4)')
            a('s_waitcnt lgkmcnt(0)')
    a(f'''
    v_and_b32 v14, 31, v2               ; r / n
    v_lshrrev_b32 v15, 5, v2            ; h
    v_and_b32 v7, 7, v14                ; b
    v_mul_u32_u24 v7, {KCP}, v7
    v_lshrrev_b32 v12, 3, v14           ; a
    v_sub_u32 v12, v12, v15             ; a-h
    v_lshl_add_u32 v7, v12, 4, v7
    s_mul_i32 s26, s23, {KCH}
    s_lshl_b32 s27, s24, 10             ; 64*16*half
    s_add_u32 s26, s26, s27
    s_add_u32 s26, s26, {KC + 16}
    v_add_u32 v14, s26, v7
    v_and_b32 v7, 31, v2
    v_lshlrev_b32 v7, 4, v7
    v_mul_u32_u24 v12, {UPL}, v15
    v_add_u32 v7, v7, v12
    s_mul_i32 s26, s23, {UCH}
    s_lshl_b32 s27, s24, 8              ; 16*16*half
    s_sub_u32 s26, s26, s27
    s_add_u32 s26, s26, {UP}
    v_add_u32 v15, s26, v7
    s_waitcnt vmcnt(0) lgkmcnt(0)
    s_barrier
    ''')
    T0, T1 = 64, 80
    NB = 3
    FB = 96
    its = [(m, ks) for m in range(16) for ks in range(2)]
    def loads(i):
        m, ks = its[i]
        f = FB + (i % NB) * 16
        return [
            f'ds_read_b128 v[{f}:{f+3}], v14 offset:{64*m - 32*ks + 32}',
            f'ds_read_b128 v[{f+4}:{f+7}], v15 offset:{ks*3072 + 16*(64 - m)}',
            f'ds_read_b128 v[{f+8}:{f+11}], v15 offset:{ks*3072 + 16*(32 - m)}',
            f'ds_read_b128 v[{f+12}:{f+15}], v14 offset:{64*(m+32) - 32*ks + 32}',
        ]
    for i in range(2):
        for l in loads(i): a(l)
    n = len(its)
    for i in range(n):
        f = FB + (i % NB) * 16
        nx = loads(i + 2) if i + 2 < n else []
        a(f's_waitcnt lgkmcnt({4 if i + 1 < n else 0})')
        c1 = '0' if i == 0 else f'v[{T1}:{T1+15}]'
        c0 = '0' if i == 0 else f'v[{T0}:{T0+15}]'
        a(f'v_mfma_f32_32x32x16_bf16 v[{T1}:{T1+15}], v[{f}:{f+3}], v[{f+4}:{f+7}], {c1}')
        if nx: a(nx[0]); a(nx[1])
        a(f'v_mfma_f32_32x32x16_bf16 v[{T0}:{T0+15}], v[{f}:{f+3}], v[{f+8}:{f+11}], {c0}')
        if nx: a(nx[2])
        a(f'v_mfma_f32_32x32x16_bf16 v[{T1}:{T1+15}], v[{f+12}:{f+15}], v[{f+8}:{f+11}], v[{T1}:{T1+15}]')
        if nx: a(nx[3])
    a(f'''
    v_and_b32 v7, 31, v2                ; n
    v_lshrrev_b32 v12, 5, v2            ; h
    v_and_b32 v13, 7, v7
    v_xor_b32 v12, v12, v13             ; h ^ (n&7)
    v_lshlrev_b32 v7, 7, v7
    s_lshl_b32 s26, s22, 13
    s_add_u32 s26, s26, {RB}
    v_add_u32 v7, s26, v7
    ''')
    for ai in range(4):
        a(f'v_xor_b32 v{16+ai}, {2*ai}, v12')
        a(f'v_lshl_add_u32 v{16+ai}, v{16+ai}, 4, v7')
    a('s_barrier')
    for tt, T in ((0, T0), (1, T1)):
        for ai in range(4):
            a(f'ds_write_b128 v{16+ai}, v[{T+4*ai}:{T+4*ai+3}] offset:{tt*4096}')
    a(f'''
    v_lshrrev_b32 v20, 3, v2            ; l>>3
    v_and_b32 v21, 7, v2                ; slot
    s_lshl_b32 s26, s24, 4              ; 16*(w&1)
    v_add_u32 v22, s26, v20
    v_xor_b32 v23, v21, v20             ; slot ^ (n'&7)
    v_lshlrev_b32 v23, 4, v23
    v_lshl_add_u32 v23, v22, 7, v23
    s_lshl_b32 s26, s23, 12
    s_add_u32 s26, s26, {RB}
    v_add_u32 v23, s26, v23             ; + wavesrc*8192 + g*1024
    v_lshrrev_b32 v24, 1, v21
    v_mul_u32_u24 v24, {UPL}, v24
    v_lshl_add_u32 v24, v22, 4, v24
    v_and_b32 v25, 1, v21
    v_xor_b32 v25, 1, v25
    v_lshl_add_u32 v24, v25, 3, v24
    s_lshl_b32 s26, s23, 9              ; 32*tt*16
    s_add_u32 s26, s26, {UP + 512}
    v_add_u32 v24, s26, v24
    s_lshl_b32 s26, s22, 11
    s_add_u32 s26, s26, s15
    s_add_u32 s26, s26, {WS_Y2}
    v_lshlrev_b32 v25, 4, v2
    v_add_u32 v25, s26, v25
    s_waitcnt lgkmcnt(0)
    s_barrier
    ''')
    RR = 96
    for g in range(2):
        for c in range(2):
            for hf in range(2):
                r = RR + g * 24 + c * 8 + hf * 4
                a(f'ds_read_b128 v[{r}:{r+3}], v23 offset:{(2*c+hf)*8192 + g*1024}')
        for c in range(2):
            r = RR + g * 24 + 16 + 2 * c
            a(f'ds_read_b64 v[{r}:{r+1}], v24 offset:{c*UCH + g*128}')
    a('s_mov_b32 s36, 0xffff0000')
    for g in range(2):
        a(f's_waitcnt lgkmcnt({6 if g == 0 else 0})')
        b = RR + g * 24
        for c in range(2):
            ur = b + 16 + 2 * c
            T = 144
            a(f'''
            v_and_b32 v{T}, s36, v{ur+1}
            v_lshlrev_b32 v{T+1}, 16, v{ur+1}
            v_and_b32 v{T+2}, s36, v{ur}
            v_lshlrev_b32 v{T+3}, 16, v{ur}
            ''')
            for j in range(4):
                a(f'v_add_f32 v{b+8*c+j}, v{b+8*c+j}, v{b+8*c+4+j}')
            for j in range(4):
                a(f'v_fmac_f32 v{b+8*c+j}, s{20+c}, v{T+j}')
        for j in range(4):
            a(f'v_cvt_pk_bf16_f32 v{148+4*g+j}, v{b+j}, v{b+8+j}')
        a(f'buffer_store_dwordx4 v[{148+4*g}:{151+4*g}], v25, s[28:31], 0 offen offset:{1024*g}')

def kernel_conv(a):
    name = 'conv_kernel'
    header(a, name)
    a(f'''
    s_cmp_ge_u32 s2, 224
    s_cbranch_scc1 L_cv_end
    s_load_dwordx4 s[4:7], s[0:1], {KA_SSMK}
    s_load_dwordx2 s[10:11], s[0:1], {KA_WS}
    s_and_b32 s12, s2, 7
    s_lshr_b32 s13, s2, 3
    ''')
    emit_conv_loads(a)
    a('s_waitcnt lgkmcnt(0)')
    srd(a, 16, 4, D * S * 2); srd(a, 28, 10, WS_SIZE)
    a(f'''
    s_lshl_b32 s26, s14, 2              ; p*4 bytes
    s_load_dword s20, s[6:7], s26
    s_waitcnt lgkmcnt(0)
    s_and_b32 s21, s20, 0xffff0000
    s_lshl_b32 s20, s20, 16
    ''')
    emit_conv(a)
    a('''
L_cv_end:
    s_endpgm
    ''')
    a.raw(kernel_desc(name, vgpr=160))
```

```python
from gen_common import *
import os
PROF = int(os.environ.get('PROF', '0'))
FAST = int(os.environ.get('FAST', '0'))
WS_PROF = 0x1A00000

XL = 0
RED = 114688
FFN_LDS = RED + 32768
STG = 0

S_WS = 4
S_Q = 8
S_OUT = 12
S_W1 = 16
S_W2 = 20
sW, sCL, sM, sJ, sC = 24, 25, 26, 27, 28
sT0, sT1, sT2, sT3 = 29, 30, 31, 32
sFLG = 33
sMASKST = 34
sALL = 36
sTMP = 38
sEX = 40
sGT = 42
sLAY = 44
sSPIN = 45
sHI = 46
sXB = 47
sHB = 48
sSTB = 49
sPROF = 60

vTID, vL16, vXR0, vXR1, vSTL, vSTS, vXP, vSTG, vRW, vRR0, vRR1, vQO, vFL, vHL, vHS, vTMP = range(16)
vX = 16
vY = 32
vCS = 40
vNM = 56
vACC = 64
vBUF = 96
vT = 160
vW1 = 176
SC = '' if FAST else ' sc0 sc1'
LSC = ' sc1'

def w1reg(ks):
    return f'v[{vW1+4*ks}:{vW1+4*ks+3}]' if ks < 20 else f'a[{224+4*(ks-20)}:{224+4*(ks-20)+3}]'
def w1pair(ks, hf):
    if ks < 20: b = vW1 + 4 * ks + 2 * hf; return f'v[{b}:{b+1}]'
    b = 224 + 4 * (ks - 20) + 2 * hf; return f'a[{b}:{b+1}]'
def w2reg(ks, ct):
    b = (ks * 2 + ct) * 4; return f'a[{b}:{b+3}]'
def w2pair(ks, ct, hf):
    b = (ks * 2 + ct) * 4 + 2 * hf; return f'a[{b}:{b+1}]'

nstamp = [0]
def stamp(a):
    if not PROF: return
    i = nstamp[0]; nstamp[0] += 1
    a(f's_waitcnt lgkmcnt(0)')
    if PROF == 1: a(f's_memrealtime s[{sTMP}:{sTMP+1}]')
    else: a(f's_memtime s[{sTMP}:{sTMP+1}]')
    a(f's_waitcnt lgkmcnt(0)')
    a(f's_mov_b32 s{sPROF+i}, s{sTMP}')

def wait_flags(a, step_sgpr_or_imm, tag):
    L = a.newlabel('L_poll'); Ld = a.newlabel('L_polld')
    a(f'''
    s_mov_b32 s{sSPIN}, 0
{L}:
    buffer_load_dword v{vT}, v{vFL}, s[{S_WS}:{S_WS+3}], 0 offen sc1
    s_waitcnt vmcnt(0)
    v_cmp_le_u32 vcc, {step_sgpr_or_imm}, v{vT}
    s_add_u32 s{sSPIN}, s{sSPIN}, 1
    s_andn2_b64 s[{sTMP}:{sTMP+1}], s[{sALL}:{sALL+1}], vcc
    s_cbranch_scc0 {Ld}
    s_cmp_lt_u32 s{sSPIN}, 0x40000
    s_cbranch_scc1 {L}
{Ld}:
    ''')

def set_flag(a, val):
    a(f'''
    s_waitcnt vmcnt(0)
    v_mov_b32 v{vT}, {val}
    v_mov_b32 v{vT+1}, s{sFLG}
    s_mov_b64 s[{sEX}:{sEX+1}], exec
    s_mov_b64 exec, 1
    buffer_store_dword v{vT}, v{vT+1}, s[{S_WS}:{S_WS+3}], 0 offen{SC}
    s_mov_b64 exec, s[{sEX}:{sEX+1}]
    ''')

def reduce_o(a, A, B, D):
    a(f'''
    s_nop 1
    v_permlane32_swap_b32 v{A}, v{B}
    s_nop 0
    v_add_f32 v{A}, v{A}, v{B}
    v_mov_b32 v{D}, v{A}
    s_nop 1
    v_permlane16_swap_b32 v{A}, v{D}
    s_nop 0
    v_add_f32 v{A}, v{A}, v{D}
    s_nop 1
    v_add_f32_dpp v{A}, v{A}, v{A} row_ror:8 row_mask:0xf bank_mask:0xf
    ''')
def spread_halves(a, A, D):
    a(f'''
    v_mov_b32 v{D}, v{A}
    s_nop 1
    v_permlane32_swap_b32 v{A}, v{D}
    s_nop 0
    ''')
def finish_stats(a, A, D, mean, rstd):
    a(f'''
    v_mul_f32 v{mean}, {1.0/448.0!r}, v{A}
    v_mul_f32 v{D}, {1.0/448.0!r}, v{D}
    v_fma_f32 v{D}, -v{mean}, v{mean}, v{D}
    v_max_f32 v{D}, 0, v{D}
    v_add_f32 v{D}, 0x3727c5ac, v{D}
    v_rsq_f32 v{rstd}, v{D}
    s_nop 0
    ''')

def stats_load_E(a, hh, sigma_off_sgpr, dst):
    a(f'buffer_load_dwordx2 v[{dst}:{dst+1}], v{vSTL}, s[{S_WS}:{S_WS+3}], s{sigma_off_sgpr} offen{LSC}')

def publish_stats(a, hh, soff):
    X = vX + 8 * hh
    A, B, Dd = vT + 2, vT + 3, vT + 4
    a(f'''
    v_add_f32 v{A}, v{X}, v{X+1}
    v_mul_f32 v{B}, v{X}, v{X}
    v_add_f32 v{Dd}, v{X+2}, v{X+3}
    v_fmac_f32 v{B}, v{X+1}, v{X+1}
    v_add_f32 v{A}, v{A}, v{Dd}
    v_fmac_f32 v{B}, v{X+2}, v{X+2}
    v_add_f32 v{Dd}, v{X+4}, v{X+5}
    v_fmac_f32 v{B}, v{X+3}, v{X+3}
    v_add_f32 v{A}, v{A}, v{Dd}
    v_fmac_f32 v{B}, v{X+4}, v{X+4}
    v_add_f32 v{Dd}, v{X+6}, v{X+7}
    v_fmac_f32 v{B}, v{X+5}, v{X+5}
    v_add_f32 v{A}, v{A}, v{Dd}
    v_fmac_f32 v{B}, v{X+6}, v{X+6}
    v_fmac_f32 v{B}, v{X+7}, v{X+7}
    ''')
    reduce_o(a, A, B, Dd)
    a(f'''
    v_and_b32 v{B}, 8, v{vTID}
    v_cmp_eq_u32 vcc, 0, v{B}
    s_nop 1
    v_cndmask_b32 v{A}, 0, v{A}, vcc
    s_mov_b64 s[{sEX}:{sEX+1}], exec
    s_mov_b64 exec, s[{sMASKST}:{sMASKST+1}]
    buffer_store_dword v{A}, v{vSTS}, s[{S_WS}:{S_WS+3}], s{soff} offen{SC}
    s_mov_b64 exec, s[{sEX}:{sEX+1}]
    ''')

def pack_round_x(a, hh, P):
    X = vX + 8 * hh
    for i in range(4):
        a(f'v_cvt_pk_bf16_f32 v{P+i}, v{X+2*i}, v{X+2*i+1}')
    for i in range(4):
        a(f'v_lshlrev_b32 v{X+2*i}, 16, v{P+i}')
        a(f'v_and_b32 v{X+2*i+1}, s{sHI}, v{P+i}')

def st_off(a, dst, sigma_delta, hh):
    a(f'''
    s_lshl_b32 s{dst}, s{sJ}, 11
    s_add_u32 s{dst}, s{dst}, s{sSTB}
    s_add_u32 s{dst}, s{dst}, {sigma_delta*64*2048 + hh*2*2048}
    ''')

def emit_E(a, hh):
    X = vX + 8 * hh; Y = vY + 4 * hh
    A, B, Dd, M, Rr = vT + 2, vT + 3, vT + 4, vT + 5, vT + 6
    st_off(a, sT0, 0, hh)
    stats_load_E(a, hh, sT0, A)
    a('s_waitcnt vmcnt(0)')
    reduce_o(a, A, B, Dd)
    spread_halves(a, A, Dd)
    finish_stats(a, A, Dd, M, Rr)
    G = vT + 8
    for i in range(4):
        a(f'v_lshlrev_b32 v{G+2*i}, 16, v{Y+i}')
        a(f'v_and_b32 v{G+2*i+1}, s{sHI}, v{Y+i}')
    for i in range(8):
        a(f'v_mul_f32 v{G+i}, v{Rr}, v{G+i}')
    for i in range(0, 8, 2):
        a(f'v_sub_f32 v{A}, v{X+i}, v{M}')
        a(f'v_sub_f32 v{B}, v{X+i+1}, v{M}')
        a(f'v_fmac_f32 v{X+i}, v{A}, v{G+i}')
        a(f'v_fmac_f32 v{X+i+1}, v{B}, v{G+i+1}')
    P = vT + 8
    pack_round_x(a, hh, P)
    a(f'''
    s_mul_i32 s{sT1}, s{sJ}, 28672
    s_add_u32 s{sT1}, s{sT1}, s{sXB}
    s_add_u32 s{sT1}, s{sT1}, {hh*2*28672}
    buffer_store_dwordx4 v[{P}:{P+3}], v{vXP}, s[{S_WS}:{S_WS+3}], s{sT1} offen{SC}
    ''')
    st_off(a, sT0, 1, hh)
    publish_stats(a, hh, sT0)

def silu_ops(T, nm, c1, P):
    ops = []
    t = vT
    for g in range(4):
        js = range(4 * g, 4 * g + 4)
        for j in js: ops.append(f'v_fmac_f32 v{T+j}, v{nm}, v{vCS+j}')
        for k, j in enumerate(js): ops.append(f'v_mul_f32 v{t+k}, v{c1}, v{T+j}')
        for k in range(4): ops.append(f'v_exp_f32 v{t+k}, v{t+k}')
        for k in range(4): ops.append(f'v_add_f32 v{t+k}, 1.0, v{t+k}')
        for k in range(4): ops.append(f'v_rcp_f32 v{t+k}, v{t+k}')
        for k, j in enumerate(js): ops.append(f'v_mul_f32 v{T+j}, v{T+j}, v{t+k}')
        for k in range(2): ops.append(f'v_cvt_pk_bf16_f32 v{P+2*g+k}, v{T+4*g+2*k}, v{T+4*g+2*k+1}')
    return ops

def emit_G1(a, hh):
    ws = f's[{S_WS}:{S_WS+3}]'
    a(f'''
    s_mul_i32 s{sT0}, s{sW}, 7168
    s_add_u32 s{sT1}, s{sT0}, s{sXB}
    s_add_u32 s{sT1}, s{sT1}, {hh*2*28672}
    s_add_u32 s{sT0}, s{sT0}, {XL + hh*57344}
    ''')
    for tl in range(2):
        for i in range(7):
            a(f'''
            s_mov_b32 m0, s{sT0}
            s_add_u32 s{sT0}, s{sT0}, {1024 if i < 6 else 28672 - 6*1024}
            buffer_load_dwordx4 v{vL16}, {ws}, s{sT1} offen{LSC} lds
            s_add_u32 s{sT1}, s{sT1}, {1024 if i < 6 else 28672 - 6*1024}
            ''')
    SB = vBUF
    for tl in range(2):
        a(f'''
        s_add_u32 s{sT2}, s{sSTB}, {64*2048 + (2*hh+tl)*2048}
        buffer_load_dwordx4 v[{SB+8*tl}:{SB+8*tl+3}], v{vSTG}, {ws}, s{sT2} offen{LSC}
        buffer_load_dwordx4 v[{SB+8*tl+4}:{SB+8*tl+7}], v{vSTG}, {ws}, s{sT2} offen offset:16{LSC}
        ''')
    a('s_waitcnt vmcnt(0)')
    for tl in range(2):
        b = SB + 8 * tl
        A, B, Dd = vT + 2, vT + 3, vT + 4
        a(f'''
        v_add_f32 v{A}, v{b}, v{b+2}
        v_add_f32 v{B}, v{b+1}, v{b+3}
        v_add_f32 v{A}, v{A}, v{b+4}
        v_add_f32 v{B}, v{B}, v{b+5}
        v_add_f32 v{A}, v{A}, v{b+6}
        v_add_f32 v{B}, v{B}, v{b+7}
        s_nop 1
        v_permlane32_swap_b32 v{A}, v{B}
        s_nop 0
        v_add_f32 v{A}, v{A}, v{B}
        ''')
        spread_halves(a, A, Dd)
        nm = vNM + 2 * (2 * hh + tl); c1 = nm + 1
        finish_stats(a, A, Dd, nm, c1)
        a(f'''
        v_sub_f32 v{nm}, 0, v{nm}
        v_mul_f32 v{c1}, 0xbfb8aa3b, v{c1}
        ''')
    a('s_barrier')
    stamp(a)
    xr = vXR0 if hh == 0 else vXR1
    NBUF = 4
    def rd(tl, ks):
        b = vBUF + 16 + 4 * ((tl * 28 + ks) % NBUF)
        return f'ds_read_b128 v[{b}:{b+3}], v{xr} offset:{tl*28672 + ks*1024}'
    seq = [(tl, ks) for tl in range(2) for ks in range(28)]
    PD = 3
    for i in range(PD): a(rd(*seq[i]))
    P = vBUF + 32
    def hstores(tl):
        Pp = P + 8 * (tl & 1)
        return [f's_mul_i32 s{sT2}, s{sM}, 8192',
                f's_add_u32 s{sT2}, s{sT2}, s{sHB}',
                f's_add_u32 s{sT2}, s{sT2}, {(2*hh+tl)*114688}',
                f'buffer_store_dwordx4 v[{Pp}:{Pp+3}], v{vHS}, {ws}, s{sT2} offen{SC}',
                f'buffer_store_dwordx4 v[{Pp+4}:{Pp+7}], v{vHS}, {ws}, s{sT2} offen offset:1024{SC}']
    for tl in range(2):
        T = vACC + 16 * tl
        slots = []
        for ks in range(28):
            i = tl * 28 + ks
            b = vBUF + 16 + 4 * (i % NBUF)
            sl = []
            rem = min(PD, len(seq) - 1 - i)
            outstanding_after = min(PD - 1, len(seq) - 1 - i)
            sl.append(f's_waitcnt lgkmcnt({outstanding_after})')
            c = '0' if ks == 0 else f'v[{T}:{T+15}]'
            sl.append(f'v_mfma_f32_32x32x16_bf16 v[{T}:{T+15}], {w1reg(ks)}, v[{b}:{b+3}], {c}')
            if i + PD < len(seq): sl.append(rd(*seq[i + PD]))
            slots.append(sl)
        if tl == 0:
            for sl in slots: a.extend(sl)
        else:
            nm = vNM + 2 * (2 * hh); fill = silu_ops(vACC, nm, nm + 1, P) + hstores(0)
            a.extend(interleave(slots, fill, start=4, end=27))
    a('s_nop 15')
    nm = vNM + 2 * (2 * hh + 1)
    a.extend(silu_ops(vACC + 16, nm, nm + 1, P + 8))
    a.extend(hstores(1))

def emit_G2(a, hh, last):
    ws = f's[{S_WS}:{S_WS+3}]'
    NB = 14
    a(f'''
    s_mul_i32 s{sT0}, s{sJ}, 114688
    s_add_u32 s{sT0}, s{sT0}, s{sHB}
    s_add_u32 s{sT0}, s{sT0}, {hh*2*114688}
    ''')
    def ld(ks):
        b = vBUF + 4 * (ks % NB)
        return [f'buffer_load_dwordx4 v[{b}:{b+3}], v{vHL}, {ws}, s{sT0} offen{LSC}', f's_add_u32 s{sT0}, s{sT0}, 1024']
    st_off(a, sT1, 1, hh)
    A, B, Dd, M, Rr = vT + 2, vT + 3, vT + 4, vT + 5, vT + 6
    stats_load_E(a, hh, sT1, A)
    for ks in range(NB): a.extend(ld(ks))
    a(f's_waitcnt vmcnt({NB})')
    reduce_o(a, A, B, Dd)
    spread_halves(a, A, Dd)
    finish_stats(a, A, Dd, M, Rr)
    for ks in range(28):
        b = vBUF + 4 * (ks % NB)
        out = min(NB - 1, 27 - ks)
        a(f's_waitcnt vmcnt({out})')
        for ct in range(2):
            T = vACC + 16 * ct
            c = '0' if ks == 0 else f'v[{T}:{T+15}]'
            a(f'v_mfma_f32_32x32x16_bf16 v[{T}:{T+15}], {w2reg(ks, ct)}, v[{b}:{b+3}], {c}')
        if ks + NB < 28: a.extend(ld(ks + NB))
    stamp(a)
    a('s_barrier')
    a('s_nop 11')
    for ct in range(2):
        for ai in range(4):
            ci = (8 * ct + 2 * ai) << 4
            t = vT + 8 + ((ct * 4 + ai) & 3)
            a(f'v_xor_b32 v{t}, {ci}, v{vRW}')
            a(f'ds_write_b128 v{t}, v[{vACC+16*ct+4*ai}:{vACC+16*ct+4*ai+3}]')
    a('''
    s_waitcnt lgkmcnt(0)
    s_barrier
    ''')
    RB = vBUF
    for p in range(4):
        a(f'ds_read_b128 v[{RB+8*p}:{RB+8*p+3}], v{vRR0} offset:{p*8192}')
        a(f'ds_read_b128 v[{RB+8*p+4}:{RB+8*p+7}], v{vRR1} offset:{p*8192}')
    a('s_waitcnt lgkmcnt(4)')
    for i in range(8): a(f'v_add_f32 v{RB+i}, v{RB+i}, v{RB+8+i}')
    a('s_waitcnt lgkmcnt(0)')
    for i in range(8): a(f'v_add_f32 v{RB+16+i}, v{RB+16+i}, v{RB+24+i}')
    for i in range(8): a(f'v_add_f32 v{RB+i}, v{RB+i}, v{RB+16+i}')
    X = vX + 8 * hh
    for i in range(8): a(f'v_fmac_f32 v{X+i}, v{Rr}, v{RB+i}')
    P = vT + 8
    pack_round_x(a, hh, P)
    return P

def kernel_ffn(a):
    name = 'ffn_kernel'
    ws = f's[{S_WS}:{S_WS+3}]'
    header(a, name)
    a(f'''
    s_cmp_ge_u32 s2, 224
    s_cbranch_scc1 L_ffn_end
    s_load_dwordx2 s[50:51], s[0:1], {KA_Q}
    s_load_dwordx4 s[52:55], s[0:1], {KA_W1}
    s_load_dwordx2 s[56:57], s[0:1], {KA_OUT}
    s_load_dwordx2 s[58:59], s[0:1], {KA_WS}
    ''')
    stamp(a)
    a(f'''
    v_lshrrev_b32 v{vTMP}, 6, v0
    s_and_b32 s{sT0}, s2, 7             ; x
    s_lshr_b32 s{sT1}, s2, 3            ; li
    v_readfirstlane_b32 s{sW}, v{vTMP}
    s_cmp_ge_u32 s{sT1}, 14
    s_cselect_b32 s{sT2}, 1, 0
    s_lshl_b32 s{sCL}, s{sT0}, 1
    s_add_u32 s{sCL}, s{sCL}, s{sT2}    ; cluster
    s_mul_i32 s{sT2}, s{sT2}, 14
    s_sub_u32 s{sM}, s{sT1}, s{sT2}     ; m
    s_cmp_ge_u32 s{sM}, 7
    s_cselect_b32 s{sJ}, 1, 0
    s_mul_i32 s{sT2}, s{sJ}, 7
    s_sub_u32 s{sC}, s{sM}, s{sT2}      ; c
    s_mov_b32 s{sHI}, 0xffff0000
    s_mov_b32 s{sALL}, -1
    s_mov_b32 s{sALL+1}, 0x00ffffff
    s_cmp_eq_u32 s{sC}, 6
    s_movk_i32 s{sT2}, 0xff
    s_cselect_b32 s{sMASKST}, 0xffff, s{sT2}
    s_mov_b32 s{sMASKST+1}, s{sMASKST}
    s_lshl_b32 s{sFLG}, s{sM}, 2
    s_add_u32 s{sFLG}, s{sFLG}, s{sW}
    s_lshl_b32 s{sFLG}, s{sFLG}, 2
    s_lshl_b32 s{sT2}, s{sCL}, 8
    s_add_u32 s{sFLG}, s{sFLG}, s{sT2}
    s_add_u32 s{sFLG}, s{sFLG}, {WS_FL}
    s_add_u32 s{sT2}, s{sT2}, {WS_FL}
    v_and_b32 v{vTMP}, 63, v0           ; lane
    v_lshlrev_b32 v{vL16}, 4, v{vTMP}
    v_lshl_add_u32 v{vFL}, v{vTMP}, 2, s{sT2}
    v_add_u32 v{vXR0}, {XL}, v{vL16}
    v_add_u32 v{vXR1}, {XL+57344}, v{vL16}
    ''')
    t8, o, n = vT, vT + 1, vT + 2
    a(f'''
    v_and_b32 v{t8}, 7, v{vTMP}
    v_lshrrev_b32 v{o}, 3, v{vTMP}
    s_lshl_b32 s{sT2}, s{sW}, 3
    v_add_u32 v{n}, s{sT2}, v{t8}       ; n = 8w + t8
    ; vSTL = n*64 + o*8
    v_lshlrev_b32 v{vSTL}, 6, v{n}
    v_lshl_add_u32 v{vSTL}, v{o}, 3, v{vSTL}
    v_and_b32 v{vT+3}, 1, v{o}
    v_add_u32 v{vT+3}, s{sC}, v{vT+3}
    v_lshlrev_b32 v{vSTS}, 6, v{n}
    v_lshl_add_u32 v{vSTS}, v{vT+3}, 3, v{vSTS}
    v_lshrrev_b32 v{vT+3}, 5, v{vTMP}
    v_lshl_add_u32 v{vSTS}, v{vT+3}, 2, v{vSTS}
    ; vXP = (4c + (o>>1))*1024 + (n + 32*(o&1))*16
    v_lshrrev_b32 v{vT+3}, 1, v{o}
    s_lshl_b32 s{sT2}, s{sC}, 2
    v_add_u32 v{vT+3}, s{sT2}, v{vT+3}
    v_lshlrev_b32 v{vXP}, 10, v{vT+3}
    v_and_b32 v{vT+3}, 1, v{o}
    v_lshl_add_u32 v{vT+3}, v{vT+3}, 5, v{n}
    v_lshl_add_u32 v{vXP}, v{vT+3}, 4, v{vXP}
    s_lshl_b32 s{sT2}, s{sCL}, 7
    s_lshl_b32 s{sT3}, s{sJ}, 5
    s_add_u32 s{sT2}, s{sT2}, s{sT3}
    v_add_u32 v{vT+3}, s{sT2}, v{n}     ; token
    v_mul_u32_u24 v{vQO}, 896, v{vT+3}
    v_lshl_add_u32 v{vQO}, v{o}, 4, v{vQO}
    s_lshl_b32 s{sT3}, s{sC}, 7
    v_add_u32 v{vQO}, s{sT3}, v{vQO}
    v_lshlrev_b32 v{vT+4}, 15, v{o}
    v_lshl_add_u32 v{vT+4}, v{vT+3}, 2, v{vT+4}
    s_lshl_b32 s{sT3}, s{sC}, 18
    s_add_u32 s{sT3}, s{sT3}, {WS_Y2}
    v_add_u32 v{vT+4}, s{sT3}, v{vT+4}
    v_and_b32 v{vT+3}, 31, v{vTMP}
    v_lshlrev_b32 v{vSTG}, 6, v{vT+3}
    v_lshrrev_b32 v{vT+5}, 5, v{vTMP}   ; h
    v_lshl_add_u32 v{vSTG}, v{vT+5}, 5, v{vSTG}
    v_and_b32 v{vT+6}, 3, v{vT+3}
    v_bfe_u32 v{vT+7}, v{vT+3}, 2, 1
    v_mul_u32_u24 v{vT+7}, 12, v{vT+7}
    v_or_b32 v{vT+6}, v{vT+6}, v{vT+7}
    v_xor_b32 v{vT+6}, v{vT+6}, v{vT+5}
    v_lshlrev_b32 v{vT+6}, 4, v{vT+6}
    v_lshl_add_u32 v{vRW}, v{vT+3}, 8, v{vT+6}
    s_lshl_b32 s{sT3}, s{sW}, 13
    s_add_u32 s{sT3}, s{sT3}, {RED}
    v_add_u32 v{vRW}, s{sT3}, v{vRW}
    v_and_b32 v{vT+6}, 3, v{t8}
    v_bfe_u32 v{vT+7}, v{t8}, 2, 1
    v_mul_u32_u24 v{vT+7}, 12, v{vT+7}
    v_or_b32 v{vT+6}, v{vT+6}, v{vT+7}
    v_lshlrev_b32 v{vT+7}, 1, v{o}
    v_xor_b32 v{vT+6}, v{vT+6}, v{vT+7}
    v_lshlrev_b32 v{vT+6}, 4, v{vT+6}
    v_lshl_add_u32 v{vRR0}, v{n}, 8, v{vT+6}
    v_add_u32 v{vRR0}, {RED}, v{vRR0}
    v_xor_b32 v{vRR1}, 16, v{vRR0}
    s_mul_i32 s{sT3}, s{sW}, 28672
    v_add_u32 v{vHL}, s{sT3}, v{vL16}
    s_lshl_b32 s{sT3}, s{sW}, 11
    v_add_u32 v{vHS}, s{sT3}, v{vL16}
    s_waitcnt lgkmcnt(0)
    ''')
    srd(a, S_Q, 50, NB_QKV); srd(a, S_W1, 52, D * F * 2); srd(a, S_W2, 54, D * F * 2)
    srd(a, S_OUT, 56, NB_QKV); srd(a, S_WS, 58, WS_SIZE)
    QB = vBUF
    for hh in range(2):
        a(f's_mov_b32 s{sT0}, {hh*64*896}')
        a(f'buffer_load_dwordx4 v[{QB+4*hh}:{QB+4*hh+3}], v{vQO}, s[{S_Q}:{S_Q+3}], s{sT0} offen')
    for hh in range(2):
        for i in range(4):
            a(f's_mov_b32 s{sT0}, {i*8192 + hh*256}')
            a(f'buffer_load_dword v{vY+4*hh+i}, v{vT+4}, {ws}, s{sT0} offen')
    a(f'''
    s_mul_i32 s{sXB}, s{sCL}, {4*28672}
    s_add_u32 s{sXB}, s{sXB}, {WS_X[0]}
    s_mul_i32 s{sHB}, s{sCL}, {4*114688}
    s_add_u32 s{sHB}, s{sHB}, {WS_H[0]}
    s_lshl_b32 s{sSTB}, s{sCL}, 13
    s_add_u32 s{sSTB}, s{sSTB}, {WS_ST}
    s_waitcnt vmcnt(8)
    ''')
    for hh in range(2):
        for i in range(4):
            a(f'v_lshlrev_b32 v{vX+8*hh+2*i}, 16, v{QB+4*hh+i}')
            a(f'v_and_b32 v{vX+8*hh+2*i+1}, s{sHI}, v{QB+4*hh+i}')
    for hh in range(2):
        st_off(a, sT0, 0, hh)
        publish_stats(a, hh, sT0)
    set_flag(a, 1)
    stamp(a)
    tmp = vT
    a(f'''
    v_and_b32 v{tmp}, 63, v0            ; lane
    v_lshrrev_b32 v{tmp+1}, 2, v{tmp}
    v_mul_u32_u24 v{tmp+1}, 3584, v{tmp+1}
    v_and_b32 v{tmp+2}, 3, v{tmp}
    v_lshl_add_u32 v{tmp+1}, v{tmp+2}, 4, v{tmp+1}
    s_lshl_b32 s{sT0}, s{sM}, 8
    s_lshl_b32 s{sT1}, s{sW}, 6
    s_add_u32 s{sT0}, s{sT0}, s{sT1}
    v_add_u32 v{tmp+1}, s{sT0}, v{tmp+1}       ; vW1D
    v_lshrrev_b32 v{tmp+2}, 3, v{tmp}
    v_mul_u32_u24 v{tmp+2}, 896, v{tmp+2}
    v_bfe_u32 v{tmp+3}, v{tmp}, 4, 1
    v_lshlrev_b32 v{tmp+3}, 2, v{tmp+3}
    v_and_b32 v{tmp+4}, 7, v{tmp}
    v_xor_b32 v{tmp+3}, v{tmp+3}, v{tmp+4}
    v_lshl_add_u32 v{tmp+2}, v{tmp+3}, 4, v{tmp+2}
    s_lshl_b32 s{sT0}, s{sC}, 7
    s_mul_i32 s{sT1}, s{sW}, {448*896}
    s_add_u32 s{sT0}, s{sT0}, s{sT1}
    v_add_u32 v{tmp+2}, s{sT0}, v{tmp+2}       ; vW2D
    v_bfe_u32 v{tmp+3}, v{tmp}, 2, 2           ; r
    v_and_b32 v{tmp+4}, 3, v{tmp}              ; cc
    v_bfe_u32 v{tmp+5}, v{tmp}, 4, 1           ; half
    v_lshrrev_b32 v{tmp+6}, 5, v{tmp}          ; hh
    v_lshl_add_u32 v{tmp+7}, v{tmp+6}, 3, v{tmp+3}
    v_lshlrev_b32 v{tmp+7}, 6, v{tmp+7}
    v_lshl_add_u32 v{tmp+7}, v{tmp+5}, 5, v{tmp+7}
    v_lshl_add_u32 v{tmp+7}, v{tmp+4}, 3, v{tmp+7}
    v_lshl_add_u32 v{tmp+8}, v{tmp+6}, 2, v{tmp+3}
    v_lshlrev_b32 v{tmp+8}, 7, v{tmp+8}
    v_lshrrev_b32 v{tmp+9}, 1, v{tmp+4}
    v_lshl_add_u32 v{tmp+9}, v{tmp+5}, 1, v{tmp+9}
    v_lshrrev_b32 v{tmp+10}, 1, v{tmp+3}
    v_lshlrev_b32 v{tmp+10}, 2, v{tmp+10}
    v_xor_b32 v{tmp+9}, v{tmp+9}, v{tmp+10}
    v_lshl_add_u32 v{tmp+8}, v{tmp+9}, 4, v{tmp+8}
    v_and_b32 v{tmp+9}, 1, v{tmp+4}
    v_lshl_add_u32 v{tmp+8}, v{tmp+9}, 3, v{tmp+8}
    s_mul_i32 s{sT0}, s{sW}, 28672
    s_add_u32 s{sT0}, s{sT0}, {STG}
    v_add_u32 v{tmp+7}, s{sT0}, v{tmp+7}
    v_add_u32 v{tmp+8}, s{sT0}, v{tmp+8}
    v_xor_b32 v{tmp+9}, 64, v{tmp+8}           ; ct=1
    ''')
    vW1D, vW2D, vA1, vA2, vA3 = tmp + 1, tmp + 2, tmp + 7, tmp + 8, tmp + 9
    NG = 21; RING = 7
    def dma(g):
        out = []
        slot = (g % RING) * 4096
        for i in range(4):
            out.append(f's_add_u32 s{sT1}, s{sT0}, {slot + i*1024}')
            out.append(f's_mov_b32 m0, s{sT1}')
            if g < 7:
                out.append(f's_mov_b32 s{sT2}, {(4*g+i)*57344}')
                out.append(f'buffer_load_dwordx4 v{vW1D}, s[{S_W1}:{S_W1+3}], s{sT2} offen lds')
            else:
                out.append(f's_mov_b32 s{sT2}, {(4*(g-7)+i)*7168}')
                out.append(f'buffer_load_dwordx4 v{vW2D}, s[{S_W2}:{S_W2+3}], s{sT2} offen lds')
        return out
    def trs(g):
        out = []
        slot = (g % RING) * 4096
        if g < 7:
            for i in range(4):
                for hf in range(2):
                    out.append(f'ds_read_b64_tr_b16 {w1pair(4*g+i, hf)}, v{vA1} offset:{slot + i*1024 + hf*256}')
        else:
            for i in range(2):
                ks = 2 * (g - 7) + i
                for ct in range(2):
                    for hf in range(2):
                        out.append(f'ds_read_b64_tr_b16 {w2pair(ks, ct, hf)}, v{vA2 if ct == 0 else vA3} offset:{slot + i*2048 + hf*1024}')
        return out
    for g in range(6): a.extend(dma(g))
    for g in range(NG):
        issued = min(NG, g + 6)
        a(f's_waitcnt vmcnt({4*(issued - g - 1)})')
        a.extend(trs(g))
        if g + 6 < NG:
            a('s_waitcnt lgkmcnt(8)')
            a.extend(dma(g + 6))
    a('s_waitcnt lgkmcnt(0)')
    a(f'''
    v_mov_b32 v{vBUF}, 0x3f803f80
    v_mov_b32 v{vBUF+1}, 0x3f803f80
    v_mov_b32 v{vBUF+2}, 0x3f803f80
    v_mov_b32 v{vBUF+3}, 0x3f803f80
    s_nop 1
    ''')
    for ks in range(28):
        c = '0' if ks == 0 else f'v[{vACC}:{vACC+15}]'
        a(f'v_mfma_f32_32x32x16_bf16 v[{vACC}:{vACC+15}], {w1reg(ks)}, v[{vBUF}:{vBUF+3}], {c}')
    a('s_nop 15')
    for i in range(16): a(f'v_mov_b32 v{vCS+i}, v{vACC+i}')
    a('s_barrier')
    stamp(a)
    for L in range(2):
        base = 1 + 6 * L
        if L == 1:
            a(f'''
            s_add_u32 s{sXB}, s{sXB}, {WS_X[1]-WS_X[0]}
            s_add_u32 s{sHB}, s{sHB}, {WS_H[1]-WS_H[0]}
            s_add_u32 s{sSTB}, s{sSTB}, {2*64*2048}
            ''')
        for hh in range(2):
            wait_flags(a, 1 if L == 0 else base - 1 + hh, 'E')
            emit_E(a, hh)
            set_flag(a, base + 1 + hh)
        stamp(a)
        for hh in range(2):
            wait_flags(a, base + 1 + hh, 'G1')
            stamp(a)
            emit_G1(a, hh)
            set_flag(a, base + 3 + hh)
            stamp(a)
        for hh in range(2):
            wait_flags(a, base + 3 + hh, 'G2')
            stamp(a)
            P = emit_G2(a, hh, L == 1)
            if L == 0:
                st_off(a, sT0, 2, hh)
                publish_stats(a, hh, sT0)
                set_flag(a, base + 5 + hh)
            else:
                a(f's_mov_b32 s{sT0}, {hh*64*896}')
                a(f'buffer_store_dwordx4 v[{P}:{P+3}], v{vQO}, s[{S_OUT}:{S_OUT+3}], s{sT0} offen')
            stamp(a)
    if PROF:
        a(f'''
        s_waitcnt lgkmcnt(0)
        s_lshl_b32 s{sT0}, s2, 2
        s_add_u32 s{sT0}, s{sT0}, s{sW}
        s_lshl_b32 s{sT0}, s{sT0}, 7
        s_add_u32 s{sT0}, s{sT0}, {WS_PROF}
        v_mov_b32 v{vT+1}, s{sT0}
        s_mov_b64 exec, 1
        ''')
        for i in range(nstamp[0]):
            a(f'v_mov_b32 v{vT}, s{sPROF+i}')
            a(f'buffer_store_dword v{vT}, v{vT+1}, {ws}, 0 offen offset:{4*i}')
            a('s_nop 1')
    a('''
L_ffn_end:
    s_endpgm
    ''')
    a.raw(kernel_desc(name, agpr=256))
```

```python
from gen_common import *

def emit_k0(a, standalone=True):
    a(f'''
    s_load_dwordx4 s[4:7], s[0:1], {KA_K}
    s_load_dwordx2 s[8:9], s[0:1], {KA_SK}
    s_load_dwordx2 s[10:11], s[0:1], {KA_WS}
    v_mul_u32_u24 v1, 9363, v0
    v_lshrrev_b32 v1, 16, v1            ; tp
    v_mul_u32_u24 v2, 7, v1
    v_sub_u32 v2, v0, v2                ; o
    s_and_b32 s12, s2, 7                ; x
    s_lshr_b32 s13, s2, 3               ; li
    s_mul_i32 s14, s12, 112
    s_lshl_b32 s15, s13, 6              ; t0
    v_lshlrev_b32 v3, 1, v1
    v_add_u32 v3, s15, v3               ; t
    v_lshlrev_b32 v4, 4, v2
    v_add_u32 v4, s14, v4
    v_mul_u32_u24 v5, 896, v3
    v_add_u32 v5, v5, v4
    v_mov_b32 v9, {hex(BIG)}
    v_cmp_gt_u32 vcc, 224, v0
    v_add_u32 v6, {-3*896 & 0xffffffff:#x}, v5
    v_add_u32 v7, {-2*896 & 0xffffffff:#x}, v5
    v_cndmask_b32 v5, v9, v5, vcc
    v_cndmask_b32 v6, v9, v6, vcc
    v_cndmask_b32 v7, v9, v7, vcc
    v_add_u32 v8, {-896 & 0xffffffff:#x}, v5
    v_cmp_le_u32 vcc, 3, v3
    s_nop 1
    v_cndmask_b32 v6, v9, v6, vcc
    v_cmp_le_u32 vcc, 2, v3
    s_nop 1
    v_cndmask_b32 v7, v9, v7, vcc       ; row t-2
    v_cndmask_b32 v8, v9, v8, vcc
    v_lshlrev_b32 v10, 6, v2            ; o*64
    s_mul_i32 s33, s12, 448
    v_add_u32 v10, s33, v10
    s_waitcnt lgkmcnt(0)
    ''')
    srd(a, 16, 4, NB_QKV); srd(a, 20, 6, NB_QKV); srd(a, 24, 8, D * 8); srd(a, 28, 10, WS_SIZE)
    K = [12, 16, 20, 24, 28]
    V = [32, 36]
    W = 40
    a(f'''
    buffer_load_dwordx4 v[{K[0]}:{K[0]+3}], v6, s[16:19], 0 offen
    buffer_load_dwordx4 v[{K[1]}:{K[1]+3}], v7, s[16:19], 0 offen
    buffer_load_dwordx4 v[{K[2]}:{K[2]+3}], v8, s[16:19], 0 offen
    buffer_load_dwordx4 v[{K[3]}:{K[3]+3}], v5, s[16:19], 0 offen
    buffer_load_dwordx4 v[{K[4]}:{K[4]+3}], v5, s[16:19], 0 offen offset:896
    buffer_load_dwordx4 v[{V[0]}:{V[0]+3}], v5, s[20:23], 0 offen
    buffer_load_dwordx4 v[{V[1]}:{V[1]+3}], v5, s[20:23], 0 offen offset:896
    ''')
    for j in range(4):
        a(f'buffer_load_dwordx4 v[{W+4*j}:{W+4*j+3}], v10, s[24:27], 0 offen offset:{16*j}')
    a(f'''
    v_lshrrev_b32 v11, 2, v1
    v_add_u32 v11, v11, v2
    v_and_b32 v11, 7, v11
    v_lshlrev_b32 v11, 4, v11
    v_and_b32 v56, 3, v1
    v_xor_b32 v56, 3, v56
    v_lshl_add_u32 v11, v56, 2, v11
    v_lshl_add_u32 v11, v2, 10, v11
    s_mov_b32 s34, 0x05040100
    s_mov_b32 s35, 0x07060302
    s_mov_b32 s36, 0xffff0000
    ''')
    a(f'''
    v_lshrrev_b32 v57, 3, v0            ; ch0 (0..31)
    v_and_b32 v58, 7, v0                ; oct
    v_lshrrev_b32 v59, 3, v57
    v_add_u32 v59, v59, v58
    v_and_b32 v60, 7, v59
    v_lshlrev_b32 v60, 4, v60
    v_lshl_add_u32 v60, v57, 7, v60
    v_add_u32 v61, 4, v59
    v_and_b32 v61, 7, v61
    v_lshlrev_b32 v61, 4, v61
    v_lshl_add_u32 v61, v57, 7, v61
    s_mul_i32 s37, s12, {56*4096}
    s_lshl_b32 s38, s15, 1
    s_add_u32 s37, s37, s38
    s_add_u32 s37, s37, {WS_UT}
    v_lshlrev_b32 v62, 12, v57
    v_lshl_add_u32 v62, v58, 4, v62
    v_add_u32 v62, s37, v62
    v_add_u32 v63, {32*4096}, v62       ; round 1
    ''')
    P = 64
    a('s_waitcnt vmcnt(0)')
    for i in range(1, 5):
        for dw in range(4):
            a(f'v_perm_b32 v{P+(i-1)*8+2*dw}, v{K[i-1]+dw}, v{K[i]+dw}, s34')
            a(f'v_perm_b32 v{P+(i-1)*8+2*dw+1}, v{K[i-1]+dw}, v{K[i]+dw}, s35')
    A_, B_ = 96, 104
    for c in range(8):
        a(f'v_dot2_f32_bf16 v{A_+c}, v{P+2*8+c}, v{W+2*c}, 0')
        a(f'v_dot2_f32_bf16 v{B_+c}, v{P+3*8+c}, v{W+2*c}, 0')
    for c in range(8):
        a(f'v_dot2_f32_bf16 v{A_+c}, v{P+0*8+c}, v{W+2*c+1}, v{A_+c}')
        a(f'v_dot2_f32_bf16 v{B_+c}, v{P+1*8+c}, v{W+2*c+1}, v{B_+c}')
    U = 112
    for dw in range(4):
        a(f'v_lshlrev_b32 v{U+2*dw}, 16, v{V[0]+dw}')
        a(f'v_and_b32 v{U+2*dw+1}, s36, v{V[0]+dw}')
        a(f'v_lshlrev_b32 v{U+8+2*dw}, 16, v{V[1]+dw}')
        a(f'v_and_b32 v{U+8+2*dw+1}, s36, v{V[1]+dw}')
    for c in range(8):
        a(f'v_mul_f32 v{A_+c}, v{A_+c}, v{U+c}')
        a(f'v_mul_f32 v{B_+c}, v{B_+c}, v{U+8+c}')
    for c in range(8):
        a(f'v_cvt_pk_bf16_f32 v{P+c}, v{B_+c}, v{A_+c}')
    a('''
    v_cmp_gt_u32 vcc, 224, v0
    s_and_saveexec_b64 s[40:41], vcc
    ''')
    for c in range(8):
        a(f'ds_write_b32 v11, v{P+c} offset:{128*c}')
    a('''
    s_mov_b64 exec, s[40:41]
    s_waitcnt lgkmcnt(0)
    s_barrier
    ds_read_b128 v[12:15], v60
    ds_read_b128 v[16:19], v61 offset:4096
    s_waitcnt lgkmcnt(1)
    buffer_store_dwordx4 v[12:15], v62, s[28:31], 0 offen
    v_cmp_gt_u32 vcc, 192, v0
    s_and_saveexec_b64 s[40:41], vcc
    s_waitcnt lgkmcnt(0)
    s_cbranch_execz L_k0_skip
    buffer_store_dwordx4 v[16:19], v63, s[28:31], 0 offen
L_k0_skip:
    s_mov_b64 exec, s[40:41]
    ''')

def kernel_k0(a):
    name = 'k0_kernel'
    header(a, name)
    a('''
    s_cmp_ge_u32 s2, 256
    s_cbranch_scc1 L_k0_end
    ''')
    emit_k0(a)
    a(f'''
    s_cmp_ge_u32 s2, 32
    s_cbranch_scc1 L_k0_end
    v_cmp_gt_u32 vcc, 64, v0
    s_and_saveexec_b64 s[40:41], vcc
    s_cbranch_execz L_k0_end
    s_lshl_b32 s33, s2, 8
    s_add_u32 s33, s33, {WS_FL}
    v_lshl_add_u32 v1, v0, 2, s33
    v_mov_b32 v2, 0
    buffer_store_dword v2, v1, s[28:31], 0 offen
L_k0_end:
    s_endpgm
    ''')
    a.raw(kernel_desc(name, vgpr=128))
```

```python
import re, sys

REG = re.compile(r'\b([vas])\[(\d+):(\d+)\]|\b([vas])(\d+)\b')
def regs_of(tok):
    out = []
    for m in REG.finditer(tok):
        if m.group(1):
            out += [(m.group(1), i) for i in range(int(m.group(2)), int(m.group(3)) + 1)]
        else:
            out.append((m.group(4), int(m.group(5))))
    if re.search(r'\bvcc\b', tok): out += [('s', 'vcc')]
    if re.search(r'\bexec\b', tok): out += [('s', 'exec')]
    if re.search(r'\bm0\b', tok): out += [('s', 'm0')]
    return out

TRANS = ('v_exp_f32', 'v_log_f32', 'v_rcp_f32', 'v_rsq_f32', 'v_sqrt_f32', 'v_sin_f32', 'v_cos_f32', 'v_rcp_iflag')

class I: pass

def parse(line):
    s = line.split(';')[0].split('//')[0].strip()
    if not s or s.endswith(':') or s.startswith('.'):
        return None
    parts = s.split(None, 1)
    op = parts[0]
    rest = parts[1] if len(parts) > 1 else ''
    ops = [o.strip() for o in re.split(r',(?![^\[]*\])', rest)] if rest else []
    i = I(); i.op = op; i.text = s; i.ops = ops
    i.defs = []; i.uses = []
    i.kind = 'other'
    base = re.sub(r'_(e32|e64|dpp|sdwa)$', '', op)
    i.base = base
    i.dpp = ('_dpp' in op) or bool(re.search(r'quad_perm|row_|wave_', rest))
    if op.startswith('v_mfma') or op.startswith('v_smfmac'):
        i.kind = 'mfma'
        i.defs = regs_of(ops[0]); i.a = regs_of(ops[1]); i.b = regs_of(ops[2]); i.c = regs_of(ops[3])
        i.uses = i.a + i.b + i.c
        i.passes = 8 if '32x32x16' in op else (4 if '16x16x32' in op else 16)
    elif op.startswith('v_'):
        i.kind = 'valu'
        if base.startswith('v_cmp'):
            i.defs = regs_of(ops[0]); i.uses = sum([regs_of(o) for o in ops[1:]], [])
            if 'cmpx' in base: i.defs.append(('s', 'exec'))
        elif base in ('v_permlane32_swap_b32', 'v_permlane16_swap_b32'):
            i.defs = regs_of(ops[0]) + regs_of(ops[1]); i.uses = list(i.defs)
        elif base in ('v_add_co_u32', 'v_sub_co_u32', 'v_addc_co_u32', 'v_subb_co_u32', 'v_subrev_co_u32', 'v_mad_u64_u32', 'v_div_scale_f32'):
            i.defs = regs_of(ops[0]) + regs_of(ops[1]); i.uses = sum([regs_of(o) for o in ops[2:]], [])
        else:
            i.defs = regs_of(ops[0]); i.uses = sum([regs_of(o) for o in ops[1:]], [])
            if base in ('v_fmac_f32', 'v_mac_f32', 'v_dot2c_f32_bf16', 'v_writelane_b32', 'v_pk_fmac_f16') or 'd16' in base:
                i.uses += i.defs
            if base == 'v_cndmask_b32' and len(ops) == 3: i.uses.append(('s', 'vcc'))
            if i.dpp or 'UNUSED_PRESERVE' in rest:
                i.uses += i.defs
        i.trans = any(base.startswith(t) for t in TRANS)
    elif op.startswith('ds_'):
        i.kind = 'ds'
        if op.startswith('ds_read') or op.startswith('ds_bpermute') or op.startswith('ds_permute') or op.startswith('ds_swizzle'):
            i.defs = regs_of(ops[0]); i.uses = sum([regs_of(o) for o in ops[1:]], [])
        else:
            i.uses = sum([regs_of(o) for o in ops], [])
    elif op.startswith('buffer_') or op.startswith('global_') or op.startswith('flat_'):
        i.kind = 'vmem'
        lds = bool(re.search(r'\blds\b', rest)) or '_lds_' in op
        i.lds = lds
        if op in ('buffer_wbl2', 'buffer_inv'):
            pass
        elif 'load' in op and not lds:
            i.defs = regs_of(ops[0]); i.uses = sum([regs_of(o) for o in ops[1:]], [])
            if 'd16' in op: i.uses += i.defs
        elif 'atomic' in op and re.search(r'\bsc0\b', rest):
            i.defs = regs_of(ops[0]) ; i.uses = sum([regs_of(o) for o in ops], [])
        else:
            i.uses = sum([regs_of(o) for o in ops], [])
            if lds: i.uses.append(('s', 'm0'))
        i.wide_store = ('store' in op) and ('x3' in op or 'x4' in op)
        if i.wide_store:
            if op.startswith('buffer'): i.sdata = regs_of(ops[0])
            else: i.sdata = regs_of(ops[1])
    elif op.startswith('s_'):
        i.kind = 'salu'
        if op.startswith('s_load') or op.startswith('s_buffer_load') or op in ('s_memtime', 's_memrealtime'):
            i.kind = 'smem'
            i.defs = regs_of(ops[0]); i.uses = sum([regs_of(o) for o in ops[1:]], [])
        elif op.startswith('s_cmp') or op.startswith('s_bitcmp') or op.startswith('s_cbranch') or op in ('s_branch', 's_barrier', 's_waitcnt', 's_nop', 's_sleep', 's_endpgm', 's_setprio', 's_setpc_b64'):
            i.uses = sum([regs_of(o) for o in ops], [])
        else:
            i.defs = regs_of(ops[0]) if ops else []
            i.uses = sum([regs_of(o) for o in ops[1:]], [])
            if 'saveexec' in op: i.defs.append(('s', 'exec'))
    return i

def states(i):
    if i.op == 's_nop':
        return int(i.ops[0], 0) + 1
    return 1

def check(lines, name='', verbose=True):
    ins = []
    for ln, l in enumerate(lines):
        s = l.strip()
        if s.endswith(':') and not s.startswith(';'):
            m = I(); m.kind = 'label'; m.op = 'label'; m.text = s; m.defs = []; m.uses = []; m.ln = ln
            ins.append(m); continue
        i = parse(l)
        if i is not None:
            i.ln = ln; ins.append(i)
    errs = []
    def err(i, msg):
        errs.append(f'{name}:{i.ln+1}: {msg}: {i.text}')
    for n, c in enumerate(ins):
        if c.kind == 'label': continue
        dist = 0
        for k in range(n - 1, max(-1, n - 40), -1):
            p = ins[k]
            if p.kind == 'label': continue
            if p.op in ('s_branch', 's_endpgm', 's_setpc_b64'): break
            pd = set(p.defs)
            need = 0; why = ''
            def upd(nd, w):
                nonlocal need, why
                if nd > need: need, why = nd, w
            vdefs = {r for r in pd if r[0] in 'va'}
            sdefs = {r for r in pd if r[0] == 's'}
            if p.kind == 'valu':
                if c.kind == 'mfma' and vdefs & set(c.uses): upd(2, 'VALU->MFMA')
                if c.kind == 'vmem' and sdefs & set(c.uses): upd(5, 'VALU sgpr->VMEM')
                if c.kind == 'valu' and sdefs & set(c.uses):
                    upd(2, 'VALU sgpr->VALU const')
                    if c.base in ('v_readlane_b32', 'v_writelane_b32'): upd(4, 'VALU sgpr->lane sel')
                if c.kind == 'valu' and c.dpp and vdefs & set(c.uses): upd(2, 'VALU->DPP')
                if c.kind == 'valu' and c.base.startswith('v_permlane') and vdefs & set(c.uses): upd(2, 'VALU->permlane')
                if c.kind == 'valu' and c.base in ('v_readlane_b32', 'v_readfirstlane_b32') and vdefs & set(c.uses): upd(1, 'VALU->readlane')
                if p.trans and c.kind == 'valu' and not c.trans and vdefs & set(c.uses): upd(1, 'trans->VALU')
                if p.base.startswith('v_dot') and (vdefs & (set(c.uses) | set(c.defs))):
                    same = c.kind == 'valu' and c.base == p.base
                    if same and len(c.ops) >= 4 and vdefs & set(regs_of(c.ops[3])) and not (vdefs & set(regs_of(c.ops[1]) + regs_of(c.ops[2]))): pass
                    else: upd(3, 'DOT->use')
                if ('s', 'exec') in pd:
                    if c.kind == 'mfma': upd(4, 'VALU exec->MFMA')
                    if c.kind == 'valu' and c.dpp: upd(5, 'VALU exec->DPP')
            if p.kind == 'mfma':
                D = set(p.defs)
                t = {2: (5, 4, 1), 4: (8, 6, 3), 8: (12, 10, 7), 16: (20, 18, 15)}[p.passes]
                if c.kind == 'mfma':
                    if D & (set(c.a) | set(c.b)): upd(t[0], 'MFMA D->MFMA A/B')
                    if D & set(c.c):
                        if not (set(c.c) == D and c.passes == p.passes): upd(t[1], 'MFMA D->MFMA C partial')
                    if D & set(c.defs) and not (set(c.defs) == D): upd(t[1], 'MFMA D->MFMA D partial')
                elif c.kind in ('valu', 'vmem', 'ds'):
                    if D & (set(c.uses) | set(c.defs)): upd(t[0], 'MFMA D->VALU/mem')
                if c.kind == 'valu' and set(p.c) & set(c.defs): upd(t[2], 'MFMA C WAR')
            if p.kind == 'vmem' and getattr(p, 'wide_store', False):
                if c.kind == 'valu' and set(p.sdata) & set(c.defs): upd(2, 'store data WAR valu')
                elif c.kind != 'vmem' and set(p.sdata) & set(c.defs): upd(1, 'store data WAR')
            if p.kind == 'salu' and ('s', 'm0') in pd and c.kind == 'vmem' and getattr(c, 'lds', False): upd(1, 'm0->lds dma')
            if need > dist:
                err(c, f'hazard {why}: need {need} have {dist} (producer line {p.ln+1}: {p.text})')
            dist += states(p)
            if dist >= 20: break
    vm = []; lg = []
    for c in ins:
        if c.kind == 'label': continue
        if c.op == 's_waitcnt':
            t = ' '.join(c.ops)
            m = re.search(r'vmcnt\((\d+)\)', t)
            if m:
                nn = int(m.group(1))
                while len(vm) > nn: vm.pop(0)
            m = re.search(r'lgkmcnt\((\d+)\)', t)
            if m:
                nn = int(m.group(1))
                if any(x[0] == 'smem' for x in lg) and nn > 0:
                    pass
                else:
                    while len(lg) > nn: lg.pop(0)
                if nn == 0: lg.clear()
            continue
        if c.op in ('s_endpgm', 's_branch', 's_setpc_b64'):
            vm.clear(); lg.clear(); continue
        touched = set(c.uses) | set(c.defs)
        for q, nm in ((vm, 'vm'), (lg, 'lgkm')):
            for x in q:
                hit = set(x[1]) & touched
                if hit and not (c.kind == x[0] and set(c.defs) & set(x[1]) and not set(c.uses) & set(x[1]) and nm == 'vm'):
                    err(c, f'{nm}cnt: touches pending dest {sorted(hit)[:3]} of line {x[2]+1}')
        if c.kind == 'vmem': vm.append(('vmem', c.defs, c.ln))
        if c.kind == 'ds': lg.append(('ds', c.defs, c.ln))
        if c.kind == 'smem': lg.append(('smem', c.defs, c.ln))
        if len(vm) > 63: err(c, 'more than 63 vmem outstanding'); vm.pop(0)
    if verbose:
        for e in errs[:12]: print(e)
        print(f'hazcheck {name}: {len(ins)} instrs, {len(errs)} problems')
    return errs

if __name__ == '__main__':
    check(open(sys.argv[1]).read().split('\n'), sys.argv[1])
```

```python
import sys
from gen_common import *
from gen_k0 import *
from gen_conv import *
import hazcheck
def main(parts, out):
    a = Asm()
    if 'k0' in parts: a.raw('; @launch kernel=k0_kernel grid=(256,1,1) block=(256,1,1) lds=7168')
    if 'conv' in parts: a.raw(f'; @launch kernel=conv_kernel grid=(224,1,1) block=(256,1,1) lds={CONV_LDS}')
    if 'ffn' in parts:
        import gen_ffn
        a.raw(f'; @launch kernel=ffn_kernel grid=(224,1,1) block=(256,1,1) lds={gen_ffn.FFN_LDS}')
    a.raw('.amdgcn_target "amdgcn-amd-amdhsa--gfx950"\n.text')
    if 'k0' in parts: kernel_k0(a)
    if 'conv' in parts: kernel_conv(a)
    if 'ffn' in parts: gen_ffn.kernel_ffn(a)
    open(out, 'w').write(a.text())
    hazcheck.check(a.text().split('\n'), out)
if __name__ == '__main__':
    main(sys.argv[1].split(','), sys.argv[2])
```
